```python
import torch

def _softmax(x, axis=-1):
    return torch.softmax(x, dim=axis)
def _gelu(x):
    return torch.nn.functional.gelu(x, approximate="tanh")
def _silu(x):
    return torch.nn.functional.silu(x)
def _sigmoid(x):
    return torch.sigmoid(x)
def _layernorm(x, axis=-1, eps=1e-5):
    m = x.mean(dim=axis, keepdim=True)
    v = x.var(dim=axis, keepdim=True, unbiased=False)
    return (x - m) / torch.sqrt(v + eps)
def _scatter_add(tgt, idx, src, axis=0):
    return tgt.clone().index_add_(axis, idx, src)
def _segment_sum(src, seg, n):
    out = torch.zeros((n,) + src.shape[1:], dtype=src.dtype)
    return out.index_add_(0, seg, src)
def _pad(x, pw):
    flat = tuple(v for pair in reversed(pw) for v in pair)
    return torch.nn.functional.pad(x, flat)

kernel_name = 'parallel_sum__ssm_conv_s4d__dense_activation_relu__prompt'

def setup_inputs():

    _w = (lambda a: (lambda t: t.to(torch.bfloat16) if t.is_floating_point() else t)(torch.as_tensor(a)))
    def _A_setup():
        Bsz, L, D, N = 1, 2048, 512, 128
        return {
            "u": _w((lambda *s: torch.randn(*s, dtype=torch.bfloat16) * 0.05)(Bsz, L, D)),
            "log_A_real": _w((lambda *s: torch.randn(*s, dtype=torch.bfloat16) * 6.4)(D, N) * 0.5),
            "A_imag": _w((lambda *s: torch.randn(*s, dtype=torch.bfloat16) * 0.1)(D, N) * 3.14),
            "C_real": _w((lambda *s: torch.randn(*s, dtype=torch.bfloat16) * 0.8)(D, N) / N ** 0.5),
            "C_imag": _w((lambda *s: torch.randn(*s, dtype=torch.bfloat16) * 0.8)(D, N) / N ** 0.5),
            "log_dt": _w((lambda *s: torch.randn(*s, dtype=torch.bfloat16) * 0.1)(D) * 0.5 - 4.0),
            "D_skip": _w((lambda *s: torch.randn(*s, dtype=torch.bfloat16) * 0.1)(D)),
        }
    _A_in = _A_setup()

    def _B_setup():
        B, S, D, Dff = 1, 2048, 512, 1376
        return {
            "x": _w((lambda *s: torch.randn(*s, dtype=torch.bfloat16) * 0.05)(B, S, D)),
            "w1": _w((lambda *s: torch.randn(*s, dtype=torch.bfloat16) * 0.05)(D, Dff)),
            "w2": _w((lambda *s: torch.randn(*s, dtype=torch.bfloat16) * 0.05)(Dff, D)),
        }
    _B_in = _B_setup()

    return {
        "A_u": _A_in["u"],
        "A_log_A_real": _A_in["log_A_real"],
        "A_A_imag": _A_in["A_imag"],
        "A_C_real": _A_in["C_real"],
        "A_C_imag": _A_in["C_imag"],
        "A_log_dt": _A_in["log_dt"],
        "A_D_skip": _A_in["D_skip"],
        "B_x": _B_in["x"],
        "B_w1": _B_in["w1"],
        "B_w2": _B_in["w2"],
    }

def reference(A_u, A_log_A_real, A_A_imag, A_C_real, A_C_imag, A_log_dt, A_D_skip, B_x, B_w1, B_w2):
    def _A_ref(u, log_A_real, A_imag, C_real, C_imag, log_dt, D_skip):
        L = u.shape[1]
        dt = torch.exp(log_dt)
        A = -torch.exp(log_A_real) + 1j * A_imag
        C = (C_real + 1j * C_imag) * dt[:, None]
        pos = (lambda x, dt: x.to(dt))(torch.arange(L), log_dt.dtype)
        P = torch.exp((A * dt[:, None])[:, :, None] * pos[None, None, :])
        K = 2.0 * torch.einsum("dn,dnl->dl", C, P).real
        L2 = 2 * L
        u_t = (lambda x, *d: x.permute(*d))(u, 0, 2, 1)
        Kf = (lambda x, *a, **k: torch.fft.rfft(x.float(), *a, **k))(K, L2)
        Uf = (lambda x, *a, **k: torch.fft.rfft(x.float(), *a, **k))(u_t, L2)
        y = (lambda x, *a, **k: torch.fft.irfft(x, *a, **k).to(torch.bfloat16))(Uf * Kf[None, :, :], L2)[:, :, :L]
        y = (lambda x, *d: x.permute(*d))(y, 0, 2, 1)
        return y + u * D_skip[None, None, :]

    def _B_ref(x, w1, w2):
        h = torch.einsum("bsd,df->bsf", x, w1)
        zero = torch.zeros_like(h)
        h = torch.maximum(h, zero)
        return torch.einsum("bsf,fd->bsd", h, w2)

    x = A_u
    xn = _layernorm(x, axis=-1)
    return x + _A_ref(xn, A_log_A_real, A_A_imag, A_C_real, A_C_imag, A_log_dt, A_D_skip) + _B_ref(xn, B_w1, B_w2)
```

```python
import re

def regs_of(tok):
    tok = tok.strip()
    if tok.startswith('-'): tok = tok[1:]
    if tok.startswith('abs(') : tok = tok[4:-1]
    if tok.startswith('|') and tok.endswith('|'): tok = tok[1:-1]
    m = re.fullmatch(r'([vsa])(\d+)', tok)
    if m: return [(m.group(1), int(m.group(2)))]
    m = re.fullmatch(r'([vsa])\[(\d+):(\d+)\]', tok)
    if m: return [(m.group(1), i) for i in range(int(m.group(2)), int(m.group(3))+1)]
    if tok == 'vcc': return [('s','vcc')]
    if tok == 'exec': return [('s','exec')]
    if tok == 'm0': return [('s','m0')]
    return []

TRANS = ('v_exp_f32','v_log_f32','v_rcp_f32','v_rsq_f32','v_sqrt_f32','v_sin_f32','v_cos_f32')

class Ins:
    def __init__(self, text):
        self.text = text
        t = text.split(';')[0].strip()
        self.label = t.endswith(':')
        self.op = '' if self.label or not t else t.split()[0]
        rest = t[len(self.op):].strip() if self.op else ''
        ops = [o.strip() for o in self._split(rest)]
        if ops:
            ops[-1:] = [ops[-1].split(' ')[0]] if ' ' in ops[-1] else ops[-1:]
        self.ops = ops
        self.mods = rest
        op = self.op
        self.valu = op.startswith('v_') and not op.startswith('v_mfma')
        self.mfma = op.startswith('v_mfma')
        self.salu = op.startswith('s_')
        self.ds = op.startswith('ds_')
        self.vmem = op.startswith('buffer_') or op.startswith('global_')
        self.trans = any(op.startswith(x) for x in TRANS)
        self.dpp = '_dpp' in op
        self.dot = op.startswith('v_dot')
        self.lds_dma = self.vmem and re.search(r'\blds\b', rest) is not None
        R = [regs_of(o) for o in ops]
        self.dst = []; self.src = []
        flat = lambda L: [x for l in L for x in l]
        if self.mfma:
            self.dst = R[0]; self.A = R[1]; self.B = R[2]; self.C = R[3]; self.src = flat(R[1:])
            self.passes = 8 if '32x32' in op else 4
        elif self.valu:
            if op.startswith('v_cmp'):
                self.dst = R[0]; self.src = flat(R[1:])
            elif op.startswith('v_permlane'):
                self.dst = flat(R); self.src = flat(R)
            elif op.startswith('v_add_co') or op.startswith('v_addc_co'):
                self.dst = R[0]+R[1]; self.src = flat(R[2:])
            else:
                self.dst = R[0]; self.src = flat(R[1:])
                if op.startswith(('v_fmac','v_dot2c','v_writelane')) or self.dpp: self.src += R[0]
                if op.startswith('v_cndmask') and len(ops) == 3: self.src.append(('s','vcc'))
        elif self.ds:
            if op.startswith('ds_read') or op.startswith('ds_bpermute'):
                self.dst = R[0]; self.src = flat(R[1:])
            else:
                self.src = flat(R)
        elif self.vmem:
            if 'load' in op and not self.lds_dma:
                self.dst = R[0]; self.src = flat(R[1:])
            else:
                self.src = flat(R)
            self.store = 'store' in op
            self.wide_store = self.store and ('x3' in op or 'x4' in op)
            if self.store:
                self.data = R[0] if op.startswith('buffer_') else R[1]
            if self.lds_dma: self.src.append(('s','m0'))
        elif self.salu:
            if op.startswith(('s_cmp','s_waitcnt','s_barrier','s_nop','s_cbranch','s_branch','s_endpgm','s_setprio','s_sleep')):
                self.src = flat(R)
                if op.startswith('s_cbranch_vcc'): self.src.append(('s','vcc'))
            else:
                self.dst = R[0] if R else []; self.src = flat(R[1:])
                if 'saveexec' in op: self.dst = self.dst + [('s','exec')]
    @staticmethod
    def _split(s):
        out=[]; depth=0; cur=''
        for ch in s:
            if ch in '[(': depth+=1
            if ch in '])': depth-=1
            if ch==',' and depth==0: out.append(cur); cur=''
            else: cur+=ch
        if cur.strip(): out.append(cur)
        return out
    def states(self):
        if self.label or not self.op: return 0
        if self.op == 's_nop': return int(self.ops[0],0)+1
        return 1

def need_between(p, c):
    n = 0
    pd = set(p.dst); cs = set(c.src); cd = set(c.dst)
    vd = {r for r in pd if r[0] in 'va'}; sd = {r for r in pd if r[0]=='s'}
    if p.valu:
        if c.mfma and vd & cs: n = max(n,2)
        if c.valu and c.dpp and vd & cs: n = max(n,2)
        if c.op.startswith('v_permlane') and vd & cs: n = max(n,2)
        if c.op.startswith(('v_readlane','v_readfirstlane')) and vd & cs: n = max(n,1)
        if p.trans and c.valu and vd & cs: n = max(n,1)
        if p.trans and (c.ds or c.vmem or c.mfma) and vd & cs: n = max(n,2)
        if sd:
            if c.vmem and sd & cs: n = max(n,5)
            if c.valu and sd & cs: n = max(n,4 if c.op.startswith(('v_readlane','v_writelane')) else 2)
            if c.salu and sd & cs: n = max(n,1)
        if p.dot and (c.valu or c.mfma or c.ds or c.vmem) and vd & (cs|cd):
            if not (c.op == p.op and not (vd & (set(regs_of(c.ops[1]))|set(regs_of(c.ops[2]))))): n = max(n,3)
        if 'sdwa' in p.op and c.valu and vd & (cs|cd): n = max(n,1)
    if p.mfma:
        far = 12 if p.passes==8 else 8
        if c.mfma:
            if vd & (set(c.A)|set(c.B)): n = max(n,far)
            if vd & set(c.C) or vd & set(c.dst):
                if not (p.dst == c.C and p.dst == c.dst and p.passes == c.passes): n = max(n, 10 if p.passes==8 else 6)
        elif (c.valu or c.ds or c.vmem) and vd & (cs|cd): n = max(n,far)
        if c.valu and set(p.C) & cd: n = max(n, 7 if p.passes==8 else 3)
    if p.salu:
        if ('s','m0') in pd and c.lds_dma: n = max(n,1)
        if ('s','exec') in pd and c.valu and c.dpp: n = max(n,1)
    if p.vmem and getattr(p,'wide_store',False):
        if set(p.data) & cd: n = max(n, 2)
    return n

class Asm:
    def __init__(self):
        self.ins = []
        self.vm = 0
        self.lg = 0
    def __call__(self, text):
        for line in text.split('\n'):
            line = line.strip()
            if not line or line.startswith(';'): continue
            i = Ins(line); self.ins.append(i)
            if i.vmem: self.vm += 1
            if i.ds: self.lg += 1
        return self
    def vtok(self): return self.vm
    def ltok(self): return self.lg
    def wait_vm(self, tok):
        n = self.vm - tok
        assert n >= 0
        self(f's_waitcnt vmcnt({min(n,63)})')
    def wait_lg(self, tok):
        n = self.lg - tok
        assert n >= 0
        self(f's_waitcnt lgkmcnt({min(n,15)})')
    def finish(self):
        out = []
        for c in self.ins:
            if not c.label and c.op:
                need = 0; dist = 0
                for p in reversed(out):
                    if p.op in ('s_branch','s_endpgm'): break
                    nb = need_between(p, c) if p.op else 0
                    if nb - dist > need: need = nb - dist
                    dist += p.states()
                    if dist >= 20: break
                while need > 0:
                    k = min(need, 16); out.append(Ins(f's_nop {k-1}')); need -= k
            out.append(c)
        return '\n'.join(('' if i.label else '    ') + i.text for i in out)

def interleave(main, fill, start=0, per=None):
    out = []; n = len(main) - start; k = 0
    for i, m in enumerate(main):
        out.append(m)
        if i >= start:
            tgt = (len(fill) * (i - start + 1) + n - 1) // n if per is None else min(len(fill), per*(i-start+1))
            while k < tgt: out.append(fill[k]); k += 1
    out += fill[k:]
    return out
```

```python
import sys
from asmlib import Asm

NAME = "parallel_sum__ssm_conv_s4d__dense_activation_relu__prompt"

E_OFF, FX_OFF, FH_OFF, FY_OFF, ST_OFF = 0, 0x1000, 0x2000, 0x3000, 0x4000
XT_OFF, Y_OFF, H_OFF, WS_SIZE = 0x100000, 0x300000, 0x500000, 0xB00000
TS_OFF = 0xB00000
HT = 86 * 2048
NONCE_ADD = 0x9E3779B9
SPIN_MAX = 1 << 16
BIG = 0x40000000

class Cfg:
    ts = False
    rot = 0
    prio_ffn = 1
    hflag_batch = 2
    hpoll_batch = 4
    touch_code = True

def vr(a, n=1):
    return f"v{a}" if n == 1 else f"v[{a}:{a+n-1}]"

def f2u(x):
    import struct
    return "0x%08x" % struct.unpack("<I", struct.pack("<f", x))[0]

class Gen:
    def __init__(self, cfg):
        self.c = cfg
        self.a = Asm()
        self.slow = []
        self.nlab = 0
        self.nts = 0

    def srd(self, s, lo, hi, size):
        self.a(f"s_mov_b32 s{s}, {lo}\ns_mov_b32 s{s+1}, {hi}\ns_mov_b32 s{s+2}, {size}\ns_mov_b32 s{s+3}, 0x00020000")

    def ts(self, k=None):
        if not self.c.ts: return
        k = self.nts; self.nts += 1
        assert k < 12
        self.a(f"s_memtime s[{76+2*k}:{77+2*k}]")

    def ts_flush(self, sWS):
        if not self.c.ts: return
        a = self.a
        n = self.nts
        a("s_waitcnt lgkmcnt(0) vmcnt(0)")
        a("s_memrealtime s[72:73]\ns_waitcnt lgkmcnt(0)")
        a("v_mov_b32 v2, 0")
        for k in range(n):
            a(f"s_sub_u32 s70, s{76+2*k}, s76\nv_writelane_b32 v2, s70, {k+2}")
        a("v_writelane_b32 v2, s74, 0\nv_writelane_b32 v2, s72, 1")
        a(f"s_lshl_b32 s70, s2, 2\ns_add_u32 s70, s70, s3\ns_lshl_b32 s70, s70, 6\ns_add_u32 s70, s70, {TS_OFF}")
        a("v_mbcnt_lo_u32_b32 v3, -1, 0\nv_mbcnt_hi_u32_b32 v3, -1, v3\nv_lshlrev_b32 v3, 2, v3")
        a("s_mov_b64 exec, 0xffff")
        a(f"buffer_store_dword v2, v3, s[{sWS}:{sWS+3}], s70 offen")
        a("s_mov_b64 exec, -1")

    def check(self, cmps, reload_text):
        a = self.a
        k = self.nlab; self.nlab += 1
        def cmp_text():
            t = f"v_cmp_ne_u32 vcc, {cmps[0][0]}, {cmps[0][1]}\n"
            for v, n in cmps[1:]:
                t += f"v_cmp_ne_u32_e64 s[68:69], {v}, {n}\ns_or_b64 vcc, vcc, s[68:69]\n"
            return t
        a(cmp_text())
        a(f"s_cbranch_vccnz L_slow{k}\nL_ret{k}:")
        self.slow.append(f"""L_slow{k}:
s_mov_b32 s71, 0
L_spin{k}:
s_sleep 1
{reload_text}
s_waitcnt vmcnt(0)
{cmp_text()}
s_cbranch_vccz L_ret{k}
s_add_u32 s71, s71, 1
s_cmp_lt_u32 s71, {SPIN_MAX}
s_cbranch_scc1 L_spin{k}
s_branch L_ret{k}
""")

    def wave_sum(self, regs):
        a = self.a
        for ctl in ("quad_perm:[1,0,3,2] row_mask:0xf bank_mask:0xf",
                    "quad_perm:[2,3,0,1] row_mask:0xf bank_mask:0xf",
                    "row_half_mirror row_mask:0xf bank_mask:0xf",
                    "row_mirror row_mask:0xf bank_mask:0xf",
                    "row_bcast:15 row_mask:0xa bank_mask:0xf",
                    "row_bcast:31 row_mask:0xc bank_mask:0xf"):
            for r in regs:
                a(f"v_add_f32_dpp v{r}, v{r}, v{r} {ctl}")

    def prologue(self):
        a = self.a
        a("s_cmp_ge_u32 s2, 512\ns_cbranch_scc1 L_end")
        a("s_load_dwordx16 s[16:31], s[0:1], 0\ns_load_dwordx8 s[32:39], s[0:1], 64\ns_load_dwordx2 s[40:41], s[0:1], 96")
        if self.c.ts:
            a("s_memrealtime s[74:75]")
        a("v_lshrrev_b32 v1, 6, v0\nv_and_b32 v2, 63, v0\nv_readfirstlane_b32 s3, v1")
        a("s_and_b32 s4, s2, 7\ns_bfe_u32 s5, s2, 0x50003")
        a("s_cmp_ge_u32 s2, 256\ns_cbranch_scc1 L_ssm")

    def ffn(self):
        a = self.a; c = self.c
        self.nts = 0
        sX, sW1, sW2, sWS, sH, sO = 44, 48, 52, 56, 60, 64
        L = 2
        vX = [4, 5, 6, 7]; vW = [8, 9, 10]; vB = [11, 12, 13, 14]; vA = [15, 16, 17]
        vN = 18; vSt = 20
        vT = 3; vT2 = 19
        ACC = 32; CS = 80; AB = 96; BB = 120; CSR = 152; ONES = 184
        self.ts()
        a("""s_lshr_b32 s6, s4, 1
s_lshl_b32 s6, s6, 2
s_lshr_b32 s11, s5, 3
s_add_u32 s6, s6, s11
s_and_b32 s7, s4, 1
s_lshl_b32 s7, s7, 3
s_and_b32 s10, s5, 7
s_add_u32 s7, s7, s10
s_mul_i32 s8, s7, 43
s_lshr_b32 s8, s8, 4
s_lshl_b32 s9, s4, 2
s_add_u32 s9, s9, s11""")
        a(f"""v_lshrrev_b32 v3, 4, v{L}
v_xor_b32 v3, v3, v{L}
v_and_b32 v3, 7, v3
v_lshrrev_b32 v19, 3, v{L}
v_lshlrev_b32 v19, 10, v19
v_lshl_add_u32 v{vX[0]}, v3, 4, v19
v_xor_b32 v{vX[1]}, 64, v{vX[0]}
v_add_u32 v{vX[2]}, {2*7168}, v{vX[0]}
v_add_u32 v{vX[3]}, {3*7168}, v{vX[1]}
v_add_u32 v{vX[1]}, {7168}, v{vX[1]}""")
        a("s_movk_i32 s12, 2560")
        for r in range(3):
            a(f"""v_add_u32 v3, {64*r}, v{L}
v_mul_u32_u24 v19, 5462, v3
v_lshrrev_b32 v19, 16, v19
v_lshlrev_b32 v3, 4, v{L}
v_mad_u32_u24 v{vW[r]}, v19, s12, v3""")
        a("""s_lshl_b32 s13, s6, 17
s_lshl_b32 s11, s3, 15
s_add_u32 s13, s13, s11
s_mul_i32 s14, s3, 16*2752
s_lshl_b32 s11, s8, 6
s_add_u32 s14, s14, s11
s_lshl_b32 s15, s3, 13
s_mul_i32 s42, s3, 3072
s_add_u32 s42, s42, 32768""")
        if c.rot == 1:
            a("s_lshr_b32 s43, s5, 3\ns_lshl_b32 s43, s43, 1\ns_add_u32 s43, s43, s5\ns_and_b32 s43, s43, 7")
        elif c.rot == 2:
            a("s_and_b32 s43, s5, 1\ns_lshl_b32 s43, s43, 2")
        else:
            a("s_mov_b32 s43, 0")
        a("s_waitcnt lgkmcnt(0)")
        self.srd(sX, "s16", "s17", 2097152)
        self.srd(sW1, "s32", "s33", 1409024)
        self.srd(sWS, "s40", "s41", WS_SIZE + (0x100000 if c.ts else 0))
        if c.prio_ffn: a(f"s_setprio {c.prio_ffn}")
        tok = {}
        def xload(ch):
            t = [f"s_add_u32 s11, s43, {ch}\ns_and_b32 s11, s11, 7\ns_lshl_b32 s11, s11, 7\ns_add_u32 s11, s11, s13\ns_add_u32 m0, s15, {(ch&1)*4096}"]
            for i in range(4):
                t.append(f"buffer_load_dwordx4 v{vX[i]}, s[{sX}:{sX+3}], s11 offen offset:{1024*i} lds")
            t[1] = t[0] + "\n" + t[1]
            return t[1:]
        def wload(ch):
            t = [f"s_add_u32 s12, s43, {ch}\ns_and_b32 s12, s12, 7\ns_mul_i32 s12, s12, {64*2752}\ns_add_u32 s12, s12, s14\ns_add_u32 m0, s42, {(ch&3)*12288}"]
            for r in range(3):
                t.append(f"buffer_load_dwordx4 v{vW[r]}, s[{sW1}:{sW1+3}], s12 offen offset:{1024*r} lds")
            t[1] = t[0] + "\n" + t[1]
            return t[1:]
        def issue(lst, key):
            for x in lst: a(x)
            tok[key] = a.vtok()
        issue(xload(0), ('x', 0)); issue(wload(0), ('w', 0))
        a(f"v_mov_b32 v3, 0\nbuffer_load_dword v{vN}, v3, s[{sWS}:{sWS+3}], 0 offen sc1")
        self.srd(sW2, "s34", "s35", 1409024)
        self.srd(sO, "s36", "s37", 2097152)
        a(f"s_mul_i32 s11, s9, {HT}\ns_add_u32 s11, s11, {H_OFF}\ns_add_u32 s{sH}, s40, s11\ns_addc_u32 s{sH+1}, s41, 0\ns_mov_b32 s{sH+2}, {HT}\ns_mov_b32 s{sH+3}, 0x00020000")
        issue(xload(1), ('x', 1)); issue(wload(1), ('w', 1))
        a(f"""v_and_b32 v3, 31, v{L}
v_lshrrev_b32 v19, 5, v{L}
v_bfe_u32 v22, v{L}, 1, 3
v_xor_b32 v19, v19, v22
v_lshlrev_b32 v19, 4, v19
v_lshl_add_u32 v19, v3, 7, v19
v_add_u32 v{vB[0]}, s15, v19""")
        for s in range(1, 4):
            a(f"v_xor_b32 v{vB[s]}, {32*s}, v{vB[0]}")
        a(f"""v_lshrrev_b32 v3, 5, v{L}
v_lshlrev_b32 v3, 3, v3
v_bfe_u32 v19, v{L}, 2, 2
v_add_u32 v3, v3, v19
v_mul_u32_u24 v3, 192, v3
v_bfe_u32 v19, v{L}, 4, 1
v_lshl_add_u32 v3, v19, 5, v3
v_and_b32 v19, 3, v{L}
v_lshl_add_u32 v3, v19, 3, v3
v_add_u32 v3, 32768, v3""")
        for k in range(3):
            a(f"s_add_u32 s{18+k}, s3, {k}\ns_cmp_ge_u32 s{18+k}, 3\ns_cselect_b32 s11, 3, 0\ns_sub_u32 s{18+k}, s{18+k}, s11")
            a(f"s_lshl_b32 s11, s{18+k}, 6\nv_add_u32 v{vA[k]}, s11, v3")
        for i in range(4): a(f"v_mov_b32 v{ONES+i}, 0x3f803f80")
        issue(wload(2), ('w', 2)); issue(wload(3), ('w', 3))
        vU = [22, 23, 24, 25]; vUz = [26, 27, 28, 29]
        a(f"""v_lshrrev_b32 v3, 2, v{L}
v_and_b32 v3, 4, v3
v_xor_b32 v3, v3, v{L}
v_and_b32 v3, 7, v3
v_lshrrev_b32 v19, 3, v{L}
v_lshlrev_b32 v19, 10, v19
v_lshl_add_u32 v{vU[0]}, v3, 4, v19""")
        for i in range(1, 4): a(f"v_add_u32 v{vU[i]}, {7168*i}, v{vU[0]}")
        a(f"s_cmp_eq_u32 s3, 3\ns_cselect_b32 s21, {BIG}, 0")
        for i in range(4): a(f"v_add_u32 v{vUz[i]}, s21, v{vU[i]}")
        a("s_mul_i32 s22, s3, 352*1024\ns_lshl_b32 s11, s10, 7\ns_add_u32 s22, s22, s11")
        vSa = 30
        a(f"""v_and_b32 v3, 31, v{L}
v_bfe_u32 v19, v3, 1, 1
v_lshlrev_b32 v19, 13, v19
v_lshrrev_b32 v{vSa}, 2, v3
v_lshl_add_u32 v19, v{vSa}, 4, v19
v_and_b32 v3, 1, v3
v_lshl_add_u32 v{vSa}, v3, 3, v19
s_lshl_b32 s23, s6, 2
s_add_u32 s23, s23, s3
s_lshl_b32 s23, s23, 7
s_add_u32 s23, s23, {ST_OFF}""")

        slots = [('W',0,0),('W',0,1),('W',0,2),('W',1,0),('W',1,1),('W',1,2),('X',0,0),('X',0,1),('X',0,2),('X',0,3),
                 ('W',2,0),('W',2,1),('X',1,0),('X',1,1),('X',1,2),('X',1,3),('W',3,0),('W',3,1),('W',3,2),('W',2,2)]
        def slot_off(u):
            k, s, i = slots[u % 20]
            return (k, (s*12288 if k == 'W' else s*4096) + 1024*i)
        def uload(us):
            out = []; i = 0
            while i < len(us):
                g = [us[i]]
                while len(g) < 4 and i+len(g) < len(us) and slot_off(us[i+len(g)]) == (slot_off(g[0])[0], slot_off(g[0])[1] + 1024*len(g)) and (us[i+len(g)] >= 40) == (g[0] >= 40):
                    g.append(us[i+len(g)])
                k, off = slot_off(g[0])
                pre = f"s_add_u32 s11, s22, {g[0]*8192}\ns_add_u32 m0, {'s42' if k=='W' else 's15'}, {off}\n"
                for n, u in enumerate(g):
                    reg = (vUz if u >= 40 else vU)[n]
                    out.append((u, pre + f"buffer_load_dwordx4 v{reg}, s[{sW2}:{sW2+3}], s11 offen offset:{1024*n} lds"))
                    pre = ""
                i += len(g)
            return out

        def areads(ch, s, buf):
            t = []
            for k in range(3):
                for h in range(2):
                    t.append(f"ds_read_b64_tr_b16 {vr(AB+12*buf+4*k+2*h,2)}, v{vA[k]} offset:{(ch&3)*12288 + s*3072 + h*768}")
            return t
        def breads(ch):
            return [f"ds_read_b128 {vr(BB+16*(ch&1)+4*s,4)}, v{vB[s]} offset:{(ch&1)*4096}" for s in range(4)]
        def mf(ch, s, buf):
            first = (ch == 0 and s == 0)
            t = []
            b = vr(BB+16*(ch&1)+4*s, 4)
            for k in range(3):
                t.append(f"v_mfma_f32_32x32x16_bf16 {vr(ACC+16*k,16)}, {vr(AB+12*buf+4*k,4)}, {b}, {'0' if first else vr(ACC+16*k,16)}")
            t.insert(1, f"v_mfma_f32_32x32x16_bf16 {vr(CS,16)}, {vr(AB+12*buf,4)}, {vr(ONES,4)}, {'0' if first else vr(CS,16)}")
            return t
        def run(mfs, fills):
            n = len(mfs); k = 0
            for i, m in enumerate(mfs):
                a(m)
                tgt = (len(fills)*(i+1) + n - 1)//n
                while k < tgt:
                    a(fills[k][0])
                    if fills[k][1] is not None: tok[fills[k][1]] = a.vtok()
                    k += 1
        pend = None
        buf = 0
        for ch in range(8):
            a.wait_vm(max(tok[('x', ch)], tok[('w', ch)]))
            a("s_waitcnt lgkmcnt(0)\ns_barrier")
            if ch == 0: self.ts()
            for x in breads(ch): a(x)
            tb = a.ltok()
            for x in areads(ch, 0, buf): a(x)
            dma_w = []
            if 1 <= ch <= 4:
                l = wload(ch+3); dma_w = [(x, ('w', ch+3) if i == 2 else None) for i, x in enumerate(l)]
            elif ch == 5: dma_w = [(x, ('u', u)) for u, x in uload([0, 1, 2])]
            elif ch == 6: dma_w = [(x, ('u', u)) for u, x in uload([3, 4, 5])]
            elif ch == 7: dma_w = [(x, ('u', u)) for u, x in uload([10, 11])]
            if ch <= 5:
                l = xload(ch+2); dma_x = [(x, ('x', ch+2) if i == 3 else None) for i, x in enumerate(l)]
            elif ch == 6: dma_x = [(x, ('u', u)) for u, x in uload([6, 7, 8, 9])]
            else: dma_x = [(x, ('u', u)) for u, x in uload([12, 13, 14, 15])]
            if ch == 5:
                dma_x.append((f"buffer_load_dwordx2 {vr(vSt,2)}, v{vSa}, s[{sWS}:{sWS+3}], s23 offen sc1", 'st'))
            if pend is not None:
                run(mf(*pend), dma_w)
            else:
                for x, key in dma_w:
                    a(x)
            for s in range(3):
                a("s_waitcnt lgkmcnt(0)")
                nx = [(x, None) for x in areads(ch, s+1, buf ^ 1)]
                fills = nx
                if s == 0: fills = nx + dma_x[:2]
                if s == 1: fills = nx + dma_x[2:]
                run(mf(ch, s, buf), fills)
                buf ^= 1
            pend = (ch, 3, buf)
            buf ^= 1
        a("s_waitcnt lgkmcnt(0)")
        m = mf(*pend)
        for x in (m[1], m[0], m[2], m[3]): a(x)
        self.ts()
        vC = 3
        a(f"""v_and_b32 v3, 3, v{L}
v_mul_u32_u24 v3, 3072, v3
v_lshrrev_b32 v19, 5, v{L}
v_lshl_add_u32 v3, v19, 4, v3
s_lshl_b32 s11, s18, 7
s_add_u32 s11, s11, {32768 + 2*12288 + 2048}
v_add_u32 v3, s11, v3
v_lshlrev_b32 v19, 4, v19
v_add_u32 v19, s42, v19""")
        a("s_mov_b32 exec_lo, 15\ns_mov_b32 exec_hi, 15")
        for q in range(4):
            a(f"ds_write_b128 v3, {vr(CS+4*q,4)} offset:{32*q}")
        a("s_mov_b64 exec, -1")
        for k in (1, 2):
            a(f"s_lshl_b32 s11, s{18+k}, 7\nv_add_u32 v{vB[k]}, s11, v19")
        a("s_waitcnt lgkmcnt(0)\ns_barrier")
        for k in (1, 2):
            for q in range(4):
                a(f"ds_read_b128 {vr(CSR+16*(k-1)+4*q,4)}, v{vB[k]} offset:{2*12288 + 2048 + 32*q}")
        tl = a.ltok()
        for u, x in uload([16, 17, 18]):
            a(x); tok[('u', u)] = a.vtok()
        a.wait_vm(tok['st'])
        a(f"v_add_u32 v{vN}, {NONCE_ADD}, v{vN}")
        self.check([(f"v{vSt+1}", f"v{vN}")], f"buffer_load_dwordx2 {vr(vSt,2)}, v{vSa}, s[{sWS}:{sWS+3}], s23 offen sc1")
        a(f"v_lshlrev_b32 v{vSt}, 16, v{vSt}")
        a(f"""s_lshr_b32 s11, s3, 1
s_lshl_b32 s24, s6, 1
s_add_u32 s24, s24, s11
s_lshl_b32 s25, s24, 7
s_mul_i32 s24, s24, {HT}
s_and_b32 s11, s3, 1
s_lshl_b32 s12, s11, 10
s_add_u32 s24, s24, s12
s_lshl_b32 s12, s8, 12
s_add_u32 s24, s24, s12
s_add_u32 s24, s24, {H_OFF}
s_lshl_b32 s11, s11, 2
s_add_u32 s25, s25, s11
s_lshl_b32 s11, s7, 3
s_add_u32 s25, s25, s11
s_add_u32 s25, s25, {FH_OFF}""")
        vL16 = 31
        a(f"v_lshlrev_b32 v{vL16}, 4, v{L}")
        for k in range(3):
            if k == 1: a.wait_lg(tl)
            src = CS if k == 0 else CSR + 16*(k-1)
            for i in range(8):
                a(f"v_pk_fma_f32 {vr(ACC+16*k+2*i,2)}, {vr(src+2*i,2)}, {vr(vSt,2)}, {vr(ACC+16*k+2*i,2)} op_sel:[0,0,0] op_sel_hi:[1,0,1] neg_lo:[0,1,0] neg_hi:[0,1,0]")
            for i in range(8):
                a(f"v_cvt_pk_bf16_f32 v{AB+8*k+i}, v{ACC+16*k+2*i}, v{ACC+16*k+2*i+1}")
            for i in range(8):
                a(f"v_pk_max_i16 v{AB+8*k+i}, v{AB+8*k+i}, 0")
            a(f"s_lshl_b32 s11, s{18+k}, 12\ns_add_u32 s11, s11, s24")
            for hh in range(2):
                a(f"buffer_store_dwordx4 {vr(AB+8*k+4*hh,4)}, v{vL16}, s[{sWS}:{sWS+3}], s11 offen offset:{2048*hh} sc1")
        tok['hst'] = a.vtok()
        for u, x in uload([19]):
            a(x); tok[('u', u)] = a.vtok()
        self.ts()
        W2R = 96; HS = 192; AT = 232; YR = 248
        own_d = "s26"; own_t = "s27"
        vTW = [4, 5]; vTX = [6, 7]; vH = [8, 9]; vHz = [10, 11]; vF = 12; vP = 13
        a(f"""s_and_b32 s26, s3, 1
s_lshr_b32 s27, s3, 1
v_lshrrev_b32 v3, 5, v{L}
v_lshlrev_b32 v3, 2, v3
v_bfe_u32 v19, v{L}, 2, 2
v_add_u32 v3, v3, v19
v_lshlrev_b32 v14, 7, v3
v_bfe_u32 v3, v3, 1, 1
v_lshl_add_u32 v14, v3, 6, v14
v_bfe_u32 v3, v{L}, 4, 1
v_lshl_add_u32 v14, v3, 5, v14
v_and_b32 v3, 3, v{L}
v_lshl_add_u32 v14, v3, 3, v14
s_lshl_b32 s11, s26, 6
v_xor_b32 v15, s11, v14
v_xor_b32 v14, 64, v15
v_add_u32 v{vTW[0]}, s42, v14
v_add_u32 v{vTW[1]}, s42, v15
v_add_u32 v{vTX[0]}, s15, v14
v_add_u32 v{vTX[1]}, s15, v15
s_lshl_b32 s11, s27, 10
v_add_u32 v{vH[1]}, s11, v{vL16}
v_xor_b32 v{vH[0]}, 1024, v{vH[1]}
v_add_u32 v{vHz[0]}, s21, v{vH[0]}
v_add_u32 v{vHz[1]}, s21, v{vH[1]}
v_and_b32 v3, 31, v{L}
v_lshlrev_b32 v{vF}, 2, v3
s_lshl_b32 s28, s9, 7
s_add_u32 s28, s28, {FH_OFF}
s_mul_i32 s29, s3, {22*2048}""")
        def tread(u, drel, dst):
            k, off = slot_off(u)
            return f"ds_read_b64_tr_b16 {vr(dst,2)}, v{(vTW if k=='W' else vTX)[drel]} offset:{off}"
        def w2reg(step, drel): return W2R + 8*step + 4*drel
        hpoll = f"buffer_load_dword v{vP}, v{vF}, s[{sWS}:{sWS+3}], s28 offen sc1"
        for b in range(6):
            us = list(range(4*b, 4*b+4))
            a.wait_vm(max(tok[('u', u)] for u in us))
            for u in us:
                for d in range(2):
                    a(tread(u, d, w2reg(u >> 1, d) + 2*(u & 1)))
            if b == c.hflag_batch:
                a.wait_vm(tok['hst'])
                a(f"v_mov_b32 v3, 0\ns_mov_b64 exec, 1\nbuffer_store_dword v{vN}, v3, s[{sWS}:{sWS+3}], s25 offen sc1\ns_mov_b64 exec, -1")
            if b == c.hpoll_batch:
                a(hpoll); tok['hp'] = a.vtok()
            a("s_waitcnt lgkmcnt(0)")
            for u, x in uload([u+20 for u in us]):
                a(x); tok[('u', u)] = a.vtok()
        self.ts()
        a.wait_vm(tok['hp'])
        self.check([(f"v{vP}", f"v{vN}")], hpoll)
        self.ts()
        seq = [(s, t) for s in range(12, 22) for t in range(2)] + [(s, 0) for s in range(12)] + [(s, 1) for s in range(12)]
        NH = 10
        cur = [None]
        def hload(i):
            s, t = seq[i]
            pre = ""
            if cur[0] != s >> 1:
                cur[0] = s >> 1
                pre = f"s_add_u32 s12, s29, {(s >> 1)*4096}\n"
            reg = (vHz if s >= 20 else vH)[t]
            a(pre + f"buffer_load_dwordx4 {vr(HS+4*(i % NH),4)}, v{reg}, s[{sH}:{sH+3}], s12 offen offset:{(s & 1)*2048} sc1")
            tok[('h', i)] = a.vtok()
        for i in range(NH): hload(i)
        vYa = 14; vS2 = 15; vR = 16; vX3 = 17; vX2 = 20; vX1 = 21; vOW = [22, 23, 24, 25]; vOR = 26; vOG = 27; vXW = 28; vXX = 29
        a(f"""v_and_b32 v3, 31, v{L}
v_lshrrev_b32 v19, 5, v{L}
v_lshlrev_b32 v{vYa}, 14, v19
v_lshl_add_u32 v{vYa}, v3, 2, v{vYa}
s_lshl_b32 s11, s10, 1
s_add_u32 s11, s11, s26
s_lshl_b32 s6, s11, 17
s_lshl_b32 s7, s9, 1
s_add_u32 s7, s7, s27
s_lshl_b32 s11, s7, 7
s_add_u32 s6, s6, s11
s_add_u32 s6, s6, {Y_OFF}
s_add_u32 s23, s11, {ST_OFF}
s_lshl_b32 s8, s10, 2
s_lshr_b32 s11, s9, 3
s_add_u32 s8, s8, s11
s_lshl_b32 s8, s8, 7
s_add_u32 s8, s8, {FY_OFF}
s_xor_b32 s11, s3, 3
s_lshl_b32 s11, s11, 13
v_add_u32 v{vX3}, s11, v{vL16}
s_xor_b32 s11, s3, 2
s_lshl_b32 s11, s11, 13
v_add_u32 v{vX2}, s11, v{vL16}
s_xor_b32 s11, s3, 1
s_mul_i32 s11, s11, 3072
v_add_u32 v{vX1}, s11, v{vL16}
v_add_u32 v{vXW}, s42, v{vL16}
v_add_u32 v{vXX}, s15, v{vL16}
v_bfe_u32 v{vOR}, v3, 1, 2
v_lshlrev_b32 v{vOR}, 4, v{vOR}
v_lshl_add_u32 v{vOR}, v3, 6, v{vOR}
v_lshl_add_u32 v{vOR}, v19, 3, v{vOR}
v_add_u32 v{vOW[0]}, s42, v{vOR}
v_xor_b32 v{vOW[1]}, 16, v{vOW[0]}
v_xor_b32 v{vOW[2]}, 32, v{vOW[0]}
v_xor_b32 v{vOW[3]}, 48, v{vOW[0]}
v_lshrrev_b32 v3, 3, v{L}
v_xor_b32 v3, v3, v{L}
v_and_b32 v3, 3, v3
v_lshrrev_b32 v19, 2, v{L}
v_lshlrev_b32 v19, 10, v19
v_lshl_add_u32 v{vOG}, v3, 4, v19
s_lshl_b32 s7, s7, 15
s_lshl_b32 s11, s10, 7
s_add_u32 s7, s7, s11
s_lshl_b32 s11, s26, 6
s_add_u32 s7, s7, s11""")
        ypoll = f"buffer_load_dword v{vP}, v{vF}, s[{sWS}:{sWS+3}], s8 offen sc1"
        def acc(d, t): return vr(ACC + 16*(2*t + d), 16)
        started = set()
        def mm(d, t, A, i):
            cc = acc(d, t) if (d, t) in started else "0"
            started.add((d, t))
            a(f"v_mfma_f32_32x32x16_bf16 {acc(d,t)}, {vr(A,4)}, {vr(HS+4*(i % NH),4)}, {cc}")
        def atread(s):
            for d in range(2):
                for h in range(2):
                    a(tread(2*s + h, d, AT + 8*(s & 1) + 4*d + 2*h))
        a.wait_vm(tok[('u', 25)])
        atread(12)
        nxt = NH
        for i, (s, t) in enumerate(seq):
            if s >= 12:
                if t == 0:
                    a("s_waitcnt lgkmcnt(0)")
                    if s < 21:
                        a.wait_vm(tok[('u', 2*s+3)])
                        atread(s+1)
                A = [AT + 8*(s & 1), AT + 8*(s & 1) + 4]
            else:
                A = [w2reg(s, 0), w2reg(s, 1)]
            a.wait_vm(tok[('h', i)])
            mm(0, t, A[0], i)
            mm(1, t, A[1], i)
            if nxt < len(seq):
                hload(nxt); nxt += 1
            if i == 22:
                a(ypoll); tok['yp'] = a.vtok()
            if i == 30:
                a.wait_vm(tok['yp'])
                self.check([(f"v{vP}", f"v{vN}")], ypoll)
            if 30 <= i < 34:
                for n in (2*(i-30), 2*(i-30)+1):
                    a(f"s_add_u32 s11, s6, {(n >> 1)*32768 + (n & 1)*8192}\nbuffer_load_dword v{YR+n}, v{vYa}, s[{sWS}:{sWS+3}], s11 offen sc1")
                if i == 33:
                    a(f"buffer_load_dword v{vS2}, v{vSa}, s[{sWS}:{sWS+3}], s23 offen sc1")
                    tok['y'] = a.vtok()
            if 35 <= i < 43:
                n = i - 35
                base = ACC + 16*(n >> 2) + 4*(n & 3)
                a(f"ds_write_b128 v{vXX}, {vr(base,4)} offset:{1024*n}")
        self.ts()
        xo = [0, 1024, 2048, 12288]
        for q in range(4):
            a(f"ds_write_b128 v{vXW}, {vr(ACC+32+4*q,4)} offset:{xo[q]}")
        a.wait_vm(tok['y'])
        a(f"v_and_b32 v{vR}, 0xffff0000, v{vS2}\nv_rcp_f32 v{vR}, v{vR}")
        YU = W2R + 48
        for n in range(8):
            a(f"v_lshlrev_b32 v{YU+2*n}, 16, v{YR+n}\nv_and_b32 v{YU+2*n+1}, 0xffff0000, v{YR+n}")
        a("s_waitcnt lgkmcnt(0)\ns_barrier")
        P = W2R
        for q in range(4):
            a(f"ds_read_b128 {vr(P+4*q,4)}, v{vX3} offset:{1024*q}")
            a(f"ds_read_b128 {vr(P+16+4*q,4)}, v{vX2} offset:{4096 + 1024*q}")
            a(f"ds_read_b128 {vr(P+32+4*q,4)}, v{vX1} offset:{32768 + xo[q]}")
        lt = a.ltok()
        O = ACC + 48
        for q in range(4):
            a(f"s_waitcnt lgkmcnt({3*(3-q) + q})")
            for h in range(2):
                r = 4*q + 2*h
                a(f"v_pk_add_f32 {vr(P+r,2)}, {vr(P+r,2)}, {vr(P+16+r,2)}")
                a(f"v_pk_add_f32 {vr(O+r,2)}, {vr(O+r,2)}, {vr(P+32+r,2)}")
            for h in range(2):
                r = 4*q + 2*h
                a(f"v_pk_add_f32 {vr(O+r,2)}, {vr(O+r,2)}, {vr(P+r,2)}")
            for h in range(2):
                r = 4*q + 2*h
                a(f"v_pk_fma_f32 {vr(O+r,2)}, {vr(O+r,2)}, {vr(vR,2)}, {vr(YU+r,2)} op_sel:[0,0,0] op_sel_hi:[1,0,1]")
            for h in range(2):
                r = 4*q + 2*h
                a(f"v_cvt_pk_bf16_f32 v{ACC+2*q+h}, v{O+r}, v{O+r+1}")
            a(f"ds_write_b64 v{vOW[q]}, {vr(ACC+2*q,2)} offset:{2*12288}")
        a("s_waitcnt lgkmcnt(0)")
        for i in range(2):
            a(f"ds_read_b128 {vr(ACC+8+4*i,4)}, v{vXW} offset:{2*12288 + 1024*i}")
        for i in range(2):
            a(f"s_waitcnt lgkmcnt({1-i})")
            a(f"s_add_u32 s11, s7, {16384*i}\nbuffer_store_dwordx4 {vr(ACC+8+4*i,4)}, v{vOG}, s[{sO}:{sO+3}], s11 offen")
        self.ts()
        self.ts_flush(sWS)
        a("s_endpgm")

    def ssm(self):
        a = self.a; c = self.c
        self.nts = 0
        sX, sWS = 44, 56
        L = 2
        PA, PB = 65536, 73728
        TB, TCH, TDUM = 65536, 2816, 65536 + 5632
        KST, KCH, UB, UCH, XCH = 4160, 4*4160, 33280, 4608, 42496
        a("L_ssm:")
        self.ts()
        tok = {}
        a("""s_lshl_b32 s6, s4, 2
s_lshr_b32 s11, s5, 3
s_add_u32 s6, s6, s11
s_and_b32 s7, s5, 7
s_lshl_b32 s8, s4, 5
s_add_u32 s8, s8, s5
s_lshr_b32 s9, s3, 1
s_and_b32 s10, s3, 1""")
        vL16 = 4; vPc = [5, 6]; vPar = 7; vCh = 8
        S0, S1 = 12, 16
        vLar, vAim, vCre, vCim, vLdt, vDsk, vN = 20, 21, 22, 23, 24, 25, 26
        a(f"""v_lshlrev_b32 v{vL16}, 4, v{L}
v_lshrrev_b32 v3, 3, v{L}
v_lshlrev_b32 v3, 10, v3
v_and_b32 v9, 7, v{L}
v_lshl_add_u32 v{vPc[0]}, v9, 4, v3
v_add_u32 v{vPc[1]}, 7168, v{vPc[0]}
s_lshl_b32 s11, s8, 9
v_lshl_add_u32 v{vPar}, v0, 1, s11
s_lshl_b32 s11, s8, 2
s_lshl_b32 s12, s9, 1
s_add_u32 s11, s11, s12
v_mov_b32 v{vCh}, s11
s_lshl_b32 s13, s6, 16
s_lshl_b32 s11, s3, 14
s_add_u32 s14, s13, s11
s_lshl_b32 s11, s7, 7
s_add_u32 s14, s14, s11
s_lshl_b32 s11, s7, 13
s_add_u32 s13, s13, s11
s_lshl_b32 s11, s3, 11
s_add_u32 s13, s13, s11
s_add_u32 s15, s11, {PA}
v_mov_b32 v3, 0""")
        a("s_waitcnt lgkmcnt(0)")
        self.srd(sX, "s16", "s17", 2097152)
        self.srd(sWS, "s40", "s41", WS_SIZE + (0x100000 if c.ts else 0))
        a("s_mov_b32 m0, s15")
        for i in range(2):
            a(f"buffer_load_dwordx4 v{vPc[i]}, s[{sX}:{sX+3}], s14 offen offset:{1024*i} lds")
        a(f"buffer_load_dwordx4 {vr(S0,4)}, v{vL16}, s[{sX}:{sX+3}], s13 offen")
        a(f"buffer_load_dwordx4 {vr(S1,4)}, v{vL16}, s[{sX}:{sX+3}], s13 offen offset:1024")
        a(f"buffer_load_dword v{vN}, v3, s[{sWS}:{sWS+3}], 0 offen sc1")
        tok['x'] = a.vtok()
        for r, p in ((vLar, 18), (vAim, 20), (vCre, 22), (vCim, 24)):
            a(f"global_load_ushort v{r}, v{vPar}, s[{p}:{p+1}]")
        a(f"global_load_ushort v{vLdt}, v{vCh}, s[26:27]\nglobal_load_ushort v{vDsk}, v{vCh}, s[28:29]")
        tok['par'] = a.vtok()
        if c.touch_code:
            a(f"""s_getpc_b64 s[12:13]
L_pc:
s_sub_u32 s12, s12, L_pc-{NAME}_kernel
s_subb_u32 s13, s13, 0
v_lshlrev_b32 v9, 7, v0
v_min_u32 v9, L_code_end-{NAME}_kernel-4, v9
global_load_dword v87, v9, s[12:13]""")
        aTab = list(range(32, 48)); aF = [48, 49, 50, 51]; aF2 = [52, 53, 54, 55]
        aT1 = [56, 57, 58, 59]; aT2 = [60, 61, 62, 63]; aT = list(range(64, 75)); aK = 75
        aA = 76; aB = 77; aTr = 78; aBw = 79; aXT = 80; aU = 81; aEw = 82; aEr = 83; vF = 84; vL8 = 85
        a(f"""v_and_b32 v3, 127, v0
v_lshlrev_b32 v3, 2, v3
s_lshl_b32 s11, s9, 15
v_add_u32 v{aTab[0]}, s11, v3""")
        for k in range(1, 16): a(f"v_xor_b32 v{aTab[k]}, {16*k}, v{aTab[0]}")
        a(f"""v_and_b32 v3, 15, v{L}
v_lshrrev_b32 v9, 4, v{L}
v_xor_b32 v11, v3, v9
v_lshlrev_b32 v11, 4, v11
v_lshl_add_u32 v11, v3, 9, v11
v_add_u32 v{aF[0]}, s11, v11""")
        for k in range(1, 4): a(f"v_xor_b32 v{aF[k]}, {64*k}, v{aF[0]}")
        a("s_lshl_b32 s12, s10, 14")
        for k in range(4): a(f"v_add_u32 v{aF2[k]}, s12, v{aF[k]}")
        a(f"""s_mul_i32 s15, s9, {TCH}
s_add_u32 s15, s15, {TB + 4}
v_lshlrev_b32 v10, 4, v{L}
v_add_u32 v10, 4, v10
v_add_u32 v11, 1, v3
v_lshlrev_b32 v11, 1, v11
v_lshl_add_u32 v11, v9, 7, v11
v_add_u32 v11, {4*512}, v11
v_and_b32 v27, 1, v3
v_cmp_eq_u32 vcc, 1, v27
v_mov_b32 v27, {TDUM - TB}
s_mul_i32 s12, s9, {TCH}
v_subrev_u32 v27, s12, v27
v_cndmask_b32 v11, v27, v11, vcc
s_cmp_eq_u32 s10, 0
s_cselect_b64 vcc, -1, 0
s_cselect_b32 s12, 4, 32
v_cndmask_b32 v10, v11, v10, vcc
v_add_u32 v{aT1[0]}, s15, v10""")
        for r in range(1, 4): a(f"v_add_u32 v{aT1[r]}, s12, v{aT1[r-1]}")
        a(f"""v_lshlrev_b32 v10, 3, v3
v_lshl_add_u32 v10, v9, 8, v10
v_add_u32 v10, {4*257}, v10
v_lshlrev_b32 v11, 2, v3
v_lshl_add_u32 v11, v9, 8, v11
v_add_u32 v11, {4*385 - 512}, v11
v_cmp_gt_u32 vcc, 2, v9""")
        for r in range(4):
            a(f"v_add_u32 v27, {4*(r & 1) + 128*(r >> 1)}, v10\nv_add_u32 v28, {64*r}, v11\nv_cndmask_b32 v27, v28, v27, vcc\nv_add_u32 v{aT2[r]}, s15, v27")
        a("v_lshlrev_b32 v10, 3, v0")
        for e in range(11):
            a(f"""v_add_u32 v11, {e-3}, v10
v_max_i32 v27, 0, v11
v_cvt_f32_u32 v27, v27
v_cvt_pk_bf16_f32 v27, v27, v27
v_and_b32 v27, 0xffff, v27
v_add_u32 v27, {256 - 0x4380}, v27
v_min_i32 v11, 128, v11
v_max3_i32 v11, v11, v27, -1
v_lshlrev_b32 v11, 2, v11
v_add_u32 v{aT[e]}, {TB + 4}, v11""")
        a(f"v_lshlrev_b32 v11, 4, v0\nv_sub_u32 v{aK}, {510*8}, v11")
        a(f"""v_and_b32 v10, 3, v3
v_mul_u32_u24 v10, {KST}, v10
v_lshrrev_b32 v11, 2, v3
v_lshlrev_b32 v11, 3, v11
v_sub_u32 v10, v10, v11
v_lshl_add_u32 v10, v9, 4, v10
s_mul_i32 s11, s9, {KCH}
s_lshl_b32 s12, s10, 8
s_sub_u32 s11, s11, s12
s_add_u32 s11, s11, {507*8 - 64*59}
v_add_u32 v{aA}, s11, v10
v_lshlrev_b32 v10, 5, v3
v_lshl_add_u32 v10, v9, 4, v10
s_mul_i32 s11, s9, {UCH}
s_sub_u32 s11, s11, s12
s_add_u32 s11, s11, {UB}
v_add_u32 v{aB}, s11, v10""")
        a(f"""v_lshrrev_b32 v10, 2, v3
v_lshl_add_u32 v10, v9, 3, v10
v_lshlrev_b32 v10, 7, v10
v_and_b32 v11, 3, v3
v_lshl_add_u32 v10, v11, 3, v10
s_lshl_b32 s11, s3, 5
s_add_u32 s11, s11, {PA}
v_add_u32 v{aTr}, s11, v10
v_and_b32 v10, 7, v3
v_xor_b32 v10, v10, v9
v_lshlrev_b32 v10, 4, v10
v_lshl_add_u32 v10, v3, 7, v10
s_lshl_b32 s42, s3, 11
s_add_u32 s42, s42, {PB}
v_add_u32 v{aBw}, s42, v10
v_lshrrev_b32 v10, 3, v{L}
v_xor_b32 v11, v10, v{L}
v_and_b32 v11, 7, v11
v_lshlrev_b32 v10, 12, v10
v_lshl_add_u32 v{aXT}, v11, 4, v10
v_lshlrev_b32 v{vL8}, 3, v{L}
s_lshl_b32 s11, s3, 10
s_add_u32 s11, s11, {UB + 480}
v_add_u32 v{aU}, s11, v{vL8}
v_bfe_u32 v10, v3, 1, 2
v_xor_b32 v10, v10, v9
v_lshlrev_b32 v10, 4, v10
v_lshl_add_u32 v10, v3, 6, v10
s_lshl_b32 s11, s3, 13
s_add_u32 s11, s11, {XCH}
v_add_u32 v{aEw}, s11, v10
v_bfe_u32 v10, v{L}, 3, 2
v_lshlrev_b32 v10, 4, v10
v_xor_b32 v10, v10, v{vL16}
s_lshl_b32 s11, s3, 11
s_add_u32 s11, s11, {XCH}
v_add_u32 v{aEr}, s11, v10
v_and_b32 v10, 31, v{L}
v_lshlrev_b32 v{vF}, 2, v10""")
        a.wait_vm(tok['x'])
        a("s_barrier")
        self.ts()
        TR = 88
        for i in range(2):
            for h in range(2):
                a(f"ds_read_b64_tr_b16 {vr(TR+4*i+2*h,2)}, v{aTr} offset:{4096*i + 512*h}")
        a(f"v_add_u32 v{vN}, {NONCE_ADD}, v{vN}")
        a("v_mov_b32 v96, 0\nv_mov_b32 v97, 0\ns_mov_b32 s11, 0x3f803f80")
        for i in range(4):
            a(f"v_dot2c_f32_bf16 v96, s11, v{S0+i}\nv_dot2c_f32_bf16 v97, s11, v{S1+i}")
        a("s_waitcnt lgkmcnt(0)")
        a(f"ds_write_b128 v{aBw}, {vr(TR,4)}")
        a(f"v_xor_b32 v10, 64, v{aBw}\nds_write_b128 v10, {vr(TR+4,4)}")
        self.wave_sum([96, 97])
        a("v_readlane_b32 s12, v96, 63\nv_readlane_b32 s13, v97, 63")
        a(f"v_add_u32 v10, s42, v{vL16}\ns_waitcnt lgkmcnt(0)")
        for i in range(2):
            a(f"ds_read_b128 {vr(TR+4*i,4)}, v10 offset:{1024*i}")
        a(f"v_mov_b32 v98, {f2u(1.0/512)}\nv_mul_f32 v99, s13, v98\nv_mul_f32 v98, s12, v98")
        a("v_mov_b32 v96, 0\nv_mov_b32 v97, 0")
        for i in range(4):
            for (S, m, acc, t) in ((S0, 98, 96, 100), (S1, 99, 97, 102)):
                a(f"""v_lshlrev_b32 v{t}, 16, v{S+i}
v_and_b32 v{t+1}, 0xffff0000, v{S+i}
v_sub_f32 v{t}, v{t}, v{m}
v_sub_f32 v{t+1}, v{t+1}, v{m}
v_fmac_f32 v{acc}, v{t}, v{t}
v_fmac_f32 v{acc}, v{t+1}, v{t+1}""")
        a(f"""s_lshl_b32 s11, s7, 2
s_add_u32 s11, s11, s3
s_lshl_b32 s43, s11, 7
s_lshl_b32 s11, s11, 16
s_lshl_b32 s12, s6, 7
s_add_u32 s11, s11, s12
s_add_u32 s11, s11, {XT_OFF}
s_add_u32 s12, s11, 32768
s_lshl_b32 s13, s6, 2
s_add_u32 s43, s43, s13
s_add_u32 s43, s43, {FX_OFF}""")
        a("s_waitcnt lgkmcnt(0)")
        a(f"buffer_store_dwordx4 {vr(TR,4)}, v{aXT}, s[{sWS}:{sWS+3}], s11 offen sc1")
        a(f"buffer_store_dwordx4 {vr(TR+4,4)}, v{aXT}, s[{sWS}:{sWS+3}], s12 offen sc1")
        tok['xt'] = a.vtok()
        self.wave_sum([96, 97])
        a(f"""v_mul_f32 v96, {f2u(1.0/512)}, v96
v_mul_f32 v97, {f2u(1.0/512)}, v97
v_cvt_pk_bf16_f32 v96, v96, v97
v_lshlrev_b32 v100, 16, v96
v_and_b32 v101, 0xffff0000, v96
v_add_f32 v100, {f2u(1e-5)}, v100
v_add_f32 v101, {f2u(1e-5)}, v101
v_cvt_pk_bf16_f32 v96, v100, v101
v_lshlrev_b32 v100, 16, v96
v_and_b32 v101, 0xffff0000, v96
v_sqrt_f32 v100, v100
v_sqrt_f32 v101, v101
v_mov_b32 v105, v{vN}
v_mov_b32 v107, v{vN}
v_cvt_pk_bf16_f32 v104, v98, v100
v_cvt_pk_bf16_f32 v106, v99, v101
s_lshl_b32 s11, s6, 3
s_add_u32 s11, s11, s7
s_lshl_b32 s11, s11, 5
s_lshl_b32 s12, s9, 4
s_add_u32 s11, s11, s12
s_lshl_b32 s12, s10, 13
s_add_u32 s11, s11, s12
s_add_u32 s11, s11, {ST_OFF}
v_mov_b32 v3, 0
s_mov_b32 exec_lo, 0
s_mov_b32 exec_hi, 0x80000000
buffer_store_dwordx4 v[104:107], v3, s[{sWS}:{sWS+3}], s11 offen sc1
s_mov_b64 exec, -1""")
        self.ts()
        a.wait_vm(tok['par'])
        L2E_HI = 1.4426950216293335; L2E_LO = 1.9259630335000111e-08
        for r in (vLar, vAim, vCre, vCim, vLdt, vDsk):
            a(f"v_lshlrev_b32 v{r}, 16, v{r}")
        a(f"s_mov_b32 s11, {f2u(L2E_HI)}\ns_mov_b32 s12, {f2u(L2E_LO)}")
        for (x, t) in ((vLar, 88), (vLdt, 90)):
            a(f"""v_mul_f32 v{t}, s11, v{x}
v_fma_f32 v{t+1}, v{x}, s11, -v{t}
v_fmac_f32 v{t+1}, s12, v{x}
v_exp_f32 v{t}, v{t}
v_mul_f32 v{t+1}, {f2u(0.6931471805599453)}, v{t+1}
v_fmac_f32 v{t}, v{t}, v{t+1}""")
        W = 92; Cc = 94
        a(f"""v_cvt_pk_bf16_f32 v88, v88, v90
v_and_b32 v90, 0xffff0000, v88
v_lshlrev_b32 v88, 16, v88
v_mul_f32 v{W}, v88, v90
v_mul_f32 v{W+1}, v{vAim}, v90
v_add_f32 v91, v90, v90
v_mul_f32 v{W}, {f2u(-L2E_HI)}, v{W}
v_mul_f32 v{W+1}, 0.15915494, v{W+1}
v_mul_f32 v{Cc}, v{vCre}, v91
v_mul_f32 v{Cc+1}, v{vCim}, v91
v_mov_b32 v96, v{Cc}""")
        E1, G, E2, E3, E4, G2 = 98, 100, 102, 104, 106, 108
        a(f"""v_mul_f32 v88, 0x42800000, v{W}
v_mul_f32 v89, 0x42800000, v{W+1}
v_fract_f32 v90, v{W+1}
v_fract_f32 v89, v89
v_exp_f32 v91, v{W}
v_exp_f32 v88, v88
v_cos_f32 v{E1}, v90
v_sin_f32 v{E1+1}, v90
v_cos_f32 v{G}, v89
v_sin_f32 v{G+1}, v89
v_mul_f32 v{E1}, v{E1}, v91
v_mul_f32 v{E1+1}, v{E1+1}, v91
v_mul_f32 v{G}, v{G}, v88
v_mul_f32 v{G+1}, v{G+1}, v88""")
        self.wave_sum([96])
        a(f"v_mov_b32 v10, s42\ns_mov_b32 exec_lo, 0\ns_mov_b32 exec_hi, 0x80000000\nds_write_b32 v10, v96\ns_mov_b64 exec, -1")
        TMP = [110, 112, 114, 116]
        def cmul_group(items):
            for n, (d, x, y) in enumerate(items):
                a(f"v_pk_mul_f32 {vr(TMP[n],2)}, {vr(x,2)}, {vr(y,2)} op_sel:[0,0] op_sel_hi:[1,0]")
            for n, (d, x, y) in enumerate(items):
                a(f"v_pk_fma_f32 {vr(d,2)}, {vr(x,2)}, {vr(y,2)}, {vr(TMP[n],2)} op_sel:[1,1,0] op_sel_hi:[0,1,1] neg_lo:[1,0,0]")
        cmul_group([(E2, E1, E1), (G2, G, G)])
        cmul_group([(E3, E2, E1), (E4, E2, E2)])
        PK = {t: [160 + 16*n + k for k in range(16)] for n, t in enumerate("ABCX")}
        def where(r, b):
            if b < 4: return ("A", 4*b + r - 1)
            if b < 8: return ("B", 4*((b-4) >> 1) + 2*(b & 1) + (1 if r == 4 else 0))
            if b < 16: return ("B", b)
            return ("C", b - 16)
        done = set(); written = set()
        def pack(t, k, src):
            a(f"v_cvt_pk_bf16_f32 v{PK[t][k]}, v{src}, {'-' if t == 'X' else ''}v{src+1}")
            done.add((t, k))
            for (t0, t1, o0, o1) in (("A", "B", 0, 32), ("C", "X", 64, 96)):
                if (t0, k) in done and (t1, k) in done and (t0, k) not in written:
                    written.add((t0, k))
                    a(f"ds_write2st64_b32 v{aTab[k]}, v{PK[t0][k]}, v{PK[t1][k]} offset0:{o0 + 2*k} offset1:{o1 + 2*k}")
        a(f"v_mov_b32 v{PK['X'][0]}, 0x00003f80"); done.add(("X", 0))
        pack("X", 1, E4)
        ch = {"x": [120, 122], "e": [124, 126], "o": [128, 130], "2": [132, 134], "1": [136, 138], "3": [140, 142]}
        cmul_group([(ch["e"][0], Cc, E4), (ch["2"][0], Cc, E2), (ch["1"][0], Cc, E1), (ch["3"][0], Cc, E3)])
        for nm, r in (("e", 4), ("2", 2), ("1", 1), ("3", 3)): pack(*where(r, 0), ch[nm][0])
        cmul_group([(ch["o"][0], ch["e"][0], G), (ch["x"][0], E4, E4)])
        pack(*where(4, 1), ch["o"][0]); pack("X", 2, ch["x"][0])
        extra = [("2", 2, b) for b in range(1, 8)] + [("1", 1, b) for b in range(1, 4)] + [("3", 3, b) for b in range(1, 4)]
        pp = {k: 0 for k in ch}
        for it in range(15):
            items = []; packs = []
            def step(nm, mul, dest):
                src = ch[nm][pp[nm]]; pp[nm] ^= 1; d = ch[nm][pp[nm]]
                items.append((d, src, mul)); packs.append((dest, d))
            step("e", G2, where(4, 2*it + 2)); step("o", G2, where(4, 2*it + 3))
            if it < 13:
                step("x", E4, ("X", it + 3))
                nm, r, b = extra[it]; step(nm, G, where(r, b))
            cmul_group(items)
            for dest, d in packs: pack(*dest, d)
            if it == 6:
                a.wait_vm(tok['xt'])
                a(f"v_mov_b32 v3, 0\ns_mov_b64 exec, 1\nbuffer_store_dword v{vN}, v3, s[{sWS}:{sWS+3}], s43 offen sc1\ns_mov_b64 exec, -1")
        assert len(written) == 32
        vP = 86
        ST = 120
        a(f"s_lshr_b32 s13, s8, 3\ns_lshl_b32 s13, s13, 7\ns_add_u32 s13, s13, {FX_OFF}")
        a(f"s_lshl_b32 s14, s3, 11\ns_add_u32 s14, s14, {ST_OFF}\ns_add_u32 s15, s14, 8192")
        xpoll = f"buffer_load_dword v{vP}, v{vF}, s[{sWS}:{sWS+3}], s13 offen sc1"
        stl = "\n".join(f"buffer_load_dwordx4 {vr(ST+8*i+4*k,4)}, v{vL16}, s[{sWS}:{sWS+3}], s{14+k} offen offset:{1024*i} sc1" for i in range(2) for k in range(2))
        a(xpoll); tok['xp'] = a.vtok()
        a(stl); tok['st'] = a.vtok()
        a("s_waitcnt lgkmcnt(0)\ns_barrier")
        self.ts()
        FX, F1, F2, D1, D2 = 160, 192, 224, 88, 92
        a(f"s_lshl_b32 s11, s9, 12\nv_mov_b32 v10, s11\nds_read2st64_b32 v[96:97], v10 offset0:{PB//256 % 256} offset1:{(PB+2048)//256 % 256}" if False else
          f"s_lshl_b32 s11, s9, 12\ns_add_u32 s11, s11, {PB}\nv_mov_b32 v10, s11\nds_read2st64_b32 v[96:97], v10 offset0:0 offset1:8")
        lt = []
        for j in range(8):
            o = 256*(j >> 2)
            a(f"ds_read_b128 {vr(FX+4*j,4)}, v{aF[j & 3]} offset:{24576 + o}")
            a(f"ds_read_b128 {vr(F1+4*j,4)}, v{aF2[j & 3]} offset:{o}")
            a(f"ds_read_b128 {vr(F2+4*j,4)}, v{aF[j & 3]} offset:{8192 + o}")
            lt.append(a.ltok())
            if j >= 3:
                jj = j - 3
                a.wait_lg(lt[jj])
                if jj == 0:
                    a(f"v_add_f32 v97, v96, v97\nv_mov_b32 v96, 0\nv_add_f32 v97, v97, v{vDsk}")
                a(f"v_mfma_f32_16x16x32_bf16 {vr(D1,4)}, {vr(F1+4*jj,4)}, {vr(FX+4*jj,4)}, {'0' if jj == 0 else vr(D1,4)}")
                a(f"v_mfma_f32_16x16x32_bf16 {vr(D2,4)}, {vr(F2+4*jj,4)}, {vr(FX+4*jj,4)}, {'0' if jj == 0 else vr(D2,4)}")
        for jj in range(5, 8):
            a.wait_lg(lt[jj])
            a(f"v_mfma_f32_16x16x32_bf16 {vr(D1,4)}, {vr(F1+4*jj,4)}, {vr(FX+4*jj,4)}, {vr(D1,4)}")
            a(f"v_mfma_f32_16x16x32_bf16 {vr(D2,4)}, {vr(F2+4*jj,4)}, {vr(FX+4*jj,4)}, {vr(D2,4)}")
        a(f"s_mul_i32 s11, s9, {TCH}\ns_add_u32 s11, s11, {TB}\nv_mov_b32 v10, s11\nds_write_b64 v10, v[96:97]")
        a.wait_vm(tok['xp'])
        self.check([(f"v{vP}", f"v{vN}")], xpoll)
        XR = 136
        a(f"s_lshl_b32 s11, s8, 13\ns_lshl_b32 s12, s3, 10\ns_add_u32 s11, s11, s12\ns_add_u32 s11, s11, {XT_OFF}\ns_add_u32 s12, s11, 4096")
        for chn in range(2):
            for i in range(2):
                a(f"buffer_load_dwordx2 {vr(XR+4*chn+2*i,2)}, v{vL8}, s[{sWS}:{sWS+3}], s{11+chn} offen offset:{512*i} sc1")
        tok['xr'] = a.vtok()
        for r in range(4): a(f"ds_write_b32 v{aT1[r]}, v{D1+r}")
        for r in range(4): a(f"ds_write_b32 v{aT2[r]}, v{D2+r}")
        a("s_waitcnt lgkmcnt(0)\ns_barrier")
        self.ts()
        FV = [160, 176]; QV = 192
        for chn in range(2):
            for e in range(11):
                a(f"ds_read_b32 v{FV[chn]+e}, v{aT[e]} offset:{TCH*chn}")
            tok[('f', chn)] = a.ltok()
        a(f"""v_mov_b32 v88, 0
v_mov_b32 v89, 0
v_mov_b32 v90, 0
v_mov_b32 v91, 0
v_bfe_u32 v10, v{L}, 1, 3
v_mul_u32_u24 v10, {KST}, v10
v_and_b32 v11, 1, v{L}
v_lshl_add_u32 v10, v11, 4, v10
v_add_u32 v10, 4096, v10
v_lshrrev_b32 v11, 5, v{L}
v_mul_u32_u24 v11, {UCH}, v11
v_and_b32 v27, 31, v{L}
v_min_u32 v27, 29, v27
v_lshl_add_u32 v11, v27, 4, v11""")
        for chn in range(2):
            a.wait_lg(tok[('f', chn)])
            f = FV[chn]
            for i in range(4):
                q = QV + 16*chn + 4*i
                for n, e in enumerate((i+6, i+4, i+2, i)):
                    a(f"v_cvt_pk_bf16_f32 v{q+n}, v{f+e+1}, v{f+e}")
                a(f"ds_write_b128 v{aK}, {vr(q,4)} offset:{KCH*chn + KST*i}")
        a(f"ds_write_b128 v10, v[88:91]\nds_write_b128 v11, v[88:91] offset:{UB}")
        a.wait_vm(tok['st'])
        self.check([(f"v{ST+2*n+1}", f"v{vN}") for n in range(8)], stl)
        RM = 160
        for n in range(8):
            a(f"v_and_b32 v{RM+2*n}, 0xffff0000, v{ST+2*n}\nv_rcp_f32 v{RM+2*n}, v{RM+2*n}\nv_lshlrev_b32 v{RM+2*n+1}, 16, v{ST+2*n}")
        for n in range(8):
            a(f"v_mul_f32 v{RM+2*n+1}, v{RM+2*n+1}, v{RM+2*n}")
        a.wait_vm(tok['xr'])
        XF = 144
        UN = 176
        for i in range(2):
            for e in range(4):
                n = 4*i + e
                for chn in range(2):
                    src = XR + 4*chn + 2*i + (e >> 1)
                    a(f"v_lshlrev_b32 v{XF+2*n+chn}, 16, v{src}" if e % 2 == 0 else f"v_and_b32 v{XF+2*n+chn}, 0xffff0000, v{src}")
        for n in range(8):
            a(f"v_pk_fma_f32 {vr(UN+2*n,2)}, {vr(XF+2*n,2)}, {vr(RM+2*n,2)}, {vr(RM+2*n,2)} op_sel:[0,0,1] op_sel_hi:[1,0,1] neg_lo:[0,0,1] neg_hi:[0,0,1]")
        for chn in range(2):
            for i in range(2):
                d = 88 + 4*chn + 2*i
                for h in range(2):
                    n = 4*i + 2*h
                    a(f"v_cvt_pk_bf16_f32 v{d+h}, v{UN+2*n+chn}, v{UN+2*n+2+chn}")
                a(f"ds_write_b64 v{aU}, {vr(d,2)} offset:{UCH*chn + 512*i}")
        a("s_waitcnt lgkmcnt(0)\ns_barrier")
        self.ts()
        CA = [160, 192]; CB = [224, 88]; CACC = 32
        def creads(r, s):
            t = []
            for i in range(8):
                o = 64*(59 - 8*i - r)
                t.append([f"ds_read_b128 {vr(CB[s]+4*i,4)}, v{aB} offset:{448 + 512*i - 64*r}",
                          f"ds_read_b64 {vr(CA[s]+4*i,2)}, v{aA} offset:{o}",
                          f"ds_read_b64 {vr(CA[s]+4*i+2,2)}, v{aA} offset:{o+8}"])
            return t
        def cm(i, m, s, first):
            t = CACC + 4*(i + m)
            return f"v_mfma_f32_16x16x32_bf16 {vr(t,4)}, {vr(CA[s]+4*i,4)}, {vr(CB[s]+4*m,4)}, {'0' if first else vr(t,4)}"
        rd = creads(0, 0); lt = []
        for g in rd:
            for x in g: a(x)
            lt.append(a.ltok())
        for r in range(4):
            s = r & 1
            order = []
            for n in range(8):
                lst = [(i, n) for i in range(n+1) if i + n <= 7] + [(n, m) for m in range(n) if m + n <= 7]
                order.append(lst)
            nxt = [x for g in creads(r+1, s ^ 1) for x in g] if r < 3 else []
            seen = set(); k = 0; cnt = 0
            if r > 0: a("s_waitcnt lgkmcnt(0)")
            for n, lst in enumerate(order):
                if r == 0: a.wait_lg(lt[n])
                for (i, m) in lst:
                    first = (r == 0 and (i + m) not in seen); seen.add(i + m)
                    a(cm(i, m, s, first)); cnt += 1
                    if (r > 0 or n >= 4) and k < len(nxt):
                        a(nxt[k]); k += 1
                        if r == 0 and k < len(nxt): a(nxt[k]); k += 1
            while k < len(nxt): a(nxt[k]); k += 1
        self.ts()
        for t in range(8):
            a(f"ds_write_b128 v{aEw}, {vr(CACC+4*t,4)} offset:{1024*t}")
        a(f"s_lshl_b32 s11, s8, 13\ns_lshl_b32 s12, s3, 11\ns_add_u32 s11, s11, s12\ns_add_u32 s11, s11, {Y_OFF}")
        a(f"s_lshl_b32 s12, s4, 2\ns_add_u32 s12, s12, s3\ns_lshl_b32 s12, s12, 7\ns_lshl_b32 s13, s5, 2\ns_add_u32 s12, s12, s13\ns_add_u32 s12, s12, {FY_OFF}")
        a("s_waitcnt lgkmcnt(0)\ns_barrier")
        R = 160
        for i in range(2):
            for src in range(4):
                a(f"ds_read_b128 {vr(R+16*i+4*src,4)}, v{aEr} offset:{8192*src + 1024*i}")
        for i in range(2):
            a(f"s_waitcnt lgkmcnt({4*(1-i)})")
            for chn in range(2):
                for e in range(4):
                    p = R + 16*i + 8*chn + e
                    a(f"v_add_f32 v{p}, v{p}, v{p+4}")
                for e in range(4):
                    p = R + 16*i + 8*chn + e
                    a(f"v_add_f32 v{p}, v{p}, v{XF+2*(4*i+e)+chn}")
            for e in range(4):
                a(f"v_cvt_pk_bf16_f32 v{88+4*i+e}, v{R+16*i+e}, v{R+16*i+8+e}")
            a(f"buffer_store_dwordx4 {vr(88+4*i,4)}, v{vL16}, s[{sWS}:{sWS+3}], s11 offen offset:{1024*i} sc1")
        a(f"v_mov_b32 v3, 0\ns_waitcnt vmcnt(0)\ns_mov_b64 exec, 1\nbuffer_store_dword v{vN}, v3, s[{sWS}:{sWS+3}], s12 offen sc1\ns_mov_b64 exec, -1")
        self.ts()
        self.ts_flush(sWS)
        a("s_cmp_lg_u32 s2, 256\ns_cbranch_scc1 L_end\ns_cmp_lg_u32 s3, 0\ns_cbranch_scc1 L_end")
        a(f"s_mov_b32 s71, 0\ns_movk_i32 s11, {FH_OFF}\ns_movk_i32 s12, {FY_OFF}\nL_bump:")
        for n in range(8):
            a(f"buffer_load_dwordx4 {vr(160+4*n,4)}, v{vL16}, s[{sWS}:{sWS+3}], s{11 + (n >> 2)} offen offset:{1024*(n & 3)} sc1")
        a("s_waitcnt vmcnt(0)")
        for n in range(32): a(f"v_xor_b32 v{160+n}, v{160+n}, v{vN}")
        for n in range(1, 32): a(f"v_or_b32 v160, v160, v{160+n}")
        a(f"""v_cmp_ne_u32 vcc, 0, v160
s_cbranch_vccz L_bump_ok
s_sleep 2
s_add_u32 s71, s71, 1
s_cmp_lt_u32 s71, {SPIN_MAX}
s_cbranch_scc1 L_bump
L_bump_ok:
s_mov_b64 exec, 1
buffer_store_dword v{vN}, v3, s[{sWS}:{sWS+3}], 0 offen sc1
L_end:
s_endpgm""")

    def build(self):
        self.prologue(); self.ffn(); self.ssm()
        for s in self.slow: self.a(s)
        body = self.a.finish()
        return f"""; LayerNorm + (S4D long convolution || ReLU FFN) + residual, one launch, two workgroup roles per CU.
; @launch grid=(512,1,1) block=(256,1,1) lds=81920
.amdgcn_target "amdgcn-amd-amdhsa--gfx950"
.text
.globl {NAME}_kernel
.p2align 8
.type {NAME}_kernel,@function
{NAME}_kernel:
{body}
L_code_end:
.section .rodata,"a"
.p2align 6
.amdhsa_kernel {NAME}_kernel
  .amdhsa_next_free_vgpr 256
  .amdhsa_next_free_sgpr 102
  .amdhsa_accum_offset 256
  .amdhsa_group_segment_fixed_size 0
  .amdhsa_kernarg_size 104
  .amdhsa_user_sgpr_count 2
  .amdhsa_user_sgpr_kernarg_segment_ptr 1
  .amdhsa_system_sgpr_workgroup_id_x 1
.end_amdhsa_kernel
"""

if __name__ == "__main__":
    cfg = Cfg()
    out = sys.argv[1]
    for kv in sys.argv[2:]:
        k, v = kv.split("=")
        assert hasattr(cfg, k), k
        setattr(cfg, k, int(v))
    open(out, "w").write(Gen(cfg).build())
```
